```python
import torch

def _softmax(x, axis=-1):
    return torch.softmax(x, dim=axis)
def _gelu(x):
    return torch.nn.functional.gelu(x, approximate="tanh")
def _silu(x):
    return torch.nn.functional.silu(x)
def _sigmoid(x):
    return torch.sigmoid(x)
def _layernorm(x, axis=-1, eps=1e-5):
    m = x.mean(dim=axis, keepdim=True)
    v = x.var(dim=axis, keepdim=True, unbiased=False)
    return (x - m) / torch.sqrt(v + eps)
def _scatter_add(tgt, idx, src, axis=0):
    return tgt.clone().index_add_(axis, idx, src)
def _segment_sum(src, seg, n):
    out = torch.zeros((n,) + src.shape[1:], dtype=src.dtype)
    return out.index_add_(0, seg, src)
def _pad(x, pw):
    flat = tuple(v for pair in reversed(pw) for v in pair)
    return torch.nn.functional.pad(x, flat)

kernel_name = 'sequential_preLN__linear_kernel_hedgehog__glu_gated_swiglu__prompt'

def setup_inputs():

    _w = (lambda a: (lambda t: t.to(torch.bfloat16) if t.is_floating_point() else t)(torch.as_tensor(a)))
    def _A_setup():
        B, S, D, H = 1, 2048, 1024, 32
        Dh = D // H
        return {
            "x": _w((lambda *s: torch.randn(*s, dtype=torch.bfloat16) * 0.05)(B, S, D)),
            "wqkv": _w((lambda *s: torch.randn(*s, dtype=torch.bfloat16) * 0.2)(D, 3 * D)),
            "w_phi": _w((lambda *s: torch.randn(*s, dtype=torch.bfloat16) * 0.2)(H, Dh, Dh) * (Dh ** -0.5)),
            "wo": _w((lambda *s: torch.randn(*s, dtype=torch.bfloat16) * 0.05)(D, D)),
        }
    _A_in = _A_setup()

    def _B_setup():
        B, S, D, F = 1, 2048, 1024, 3584
        return {
            "x": _w((lambda *s: torch.randn(*s, dtype=torch.bfloat16) * 0.05)(B, S, D)),
            "w1": _w((lambda *s: torch.randn(*s, dtype=torch.bfloat16) * 0.4)(D, F) * (2.0 / D) ** 0.5),
            "w3": _w((lambda *s: torch.randn(*s, dtype=torch.bfloat16) * 0.4)(D, F) * (2.0 / D) ** 0.5),
            "w2": _w((lambda *s: torch.randn(*s, dtype=torch.bfloat16) * 0.4)(F, D) * (2.0 / F) ** 0.5),
        }
    _B_in = _B_setup()

    return {
        "A_x": _A_in["x"],
        "A_wqkv": _A_in["wqkv"],
        "A_w_phi": _A_in["w_phi"],
        "A_wo": _A_in["wo"],
        "B_x": _B_in["x"],
        "B_w1": _B_in["w1"],
        "B_w3": _B_in["w3"],
        "B_w2": _B_in["w2"],
    }

def reference(A_x, A_wqkv, A_w_phi, A_wo, B_x, B_w1, B_w3, B_w2):
    def _A_ref(x, wqkv, w_phi, wo):
        B, S, D = x.shape
        H = 32; Dh = D // H
        qkv = (lambda x, *d: x.permute(*d))((x @ wqkv).reshape(B, S, 3, H, Dh), 2, 0, 3, 1, 4)
        q, k, v = qkv[0], qkv[1], qkv[2]
        pq = torch.einsum("bhsd,hdf->bhsf", q, w_phi)
        pk = torch.einsum("bhsd,hdf->bhsf", k, w_phi)
        phi_q = torch.concatenate([_softmax(pq, axis=-1), _softmax(-pq, axis=-1)], axis=-1)
        phi_k = torch.concatenate([_softmax(pk, axis=-1), _softmax(-pk, axis=-1)], axis=-1)
        kv = torch.einsum("bhsf,bhsd->bhfd", phi_k, v)
        z  = torch.einsum("bhsf->bhf", phi_k)
        num = torch.einsum("bhqf,bhfd->bhqd", phi_q, kv)
        den = torch.einsum("bhqf,bhf->bhq", phi_q, z)[..., None] + 1e-6
        o = num / den
        return (lambda x, *d: x.permute(*d))(o, 0, 2, 1, 3).reshape(B, S, D) @ wo

    def _B_ref(x, w1, w3, w2):
        gate = torch.einsum("bsd,df->bsf", x, w1)
        up = torch.einsum("bsd,df->bsf", x, w3)
        h = _silu(gate) * up
        out = torch.einsum("bsf,fd->bsd", h, w2)
        return out

    x = A_x
    h = x + _A_ref(_layernorm(x, axis=-1), A_wqkv, A_w_phi, A_wo)
    h2 = h + _B_ref(_layernorm(h, axis=-1), B_w1, B_w3, B_w2)
    return h2
```

```python
KNAME = "sequential_preLN__linear_kernel_hedgehog__glu_gated_swiglu__prompt_kernel"

class Asm:
    def __init__(self):
        self.lines = []
        self.uid = 0
    def __call__(self, s):
        for l in s.split("\n"):
            self.lines.append("    " + l.strip() if not l.strip().endswith(":") else l.strip())
    def label(self, name):
        self.lines.append(name + ":")
    def newlabel(self, base="L"):
        self.uid += 1
        return f"{base}_{self.uid}"
    def text(self):
        return "\n".join(self.lines) + "\n"

def kernel_text(name, body, vgpr, sgpr=102, accum=None, wgid_y=False):
    if accum is None:
        accum = min(256, (vgpr + 3) // 4 * 4)
    t = f""".text
.globl {name}
.p2align 8
.type {name},@function
{name}:
{body}
"""
    d = f""".section .rodata,"a"
.p2align 6
.amdhsa_kernel {name}
  .amdhsa_next_free_vgpr {vgpr}
  .amdhsa_next_free_sgpr {sgpr}
  .amdhsa_accum_offset {accum}
  .amdhsa_group_segment_fixed_size 0
  .amdhsa_kernarg_size 88
  .amdhsa_user_sgpr_count 2
  .amdhsa_user_sgpr_kernarg_segment_ptr 1
  .amdhsa_system_sgpr_workgroup_id_x 1
{"  .amdhsa_system_sgpr_workgroup_id_y 1" if wgid_y else ""}
  .amdhsa_float_denorm_mode_32 3
  .amdhsa_float_denorm_mode_16_64 3
.end_amdhsa_kernel
"""
    return t, d

def file_text(launches, kernels):
    h = ""
    for (n, g, b, l) in launches:
        h += f"; @launch kernel={n} grid=({g[0]},{g[1]},{g[2]}) block=({b[0]},{b[1]},{b[2]}) lds={l}\n"
    h += '.amdgcn_target "amdgcn-amd-amdhsa--gfx950"\n'
    for t, d in kernels:
        h += t
    for t, d in kernels:
        h += d
    return h

def srd(a, dst, base_lo, nbytes):
    a(f"s_mov_b32 s{dst}, s{base_lo}")
    a(f"s_and_b32 s{dst+1}, s{base_lo+1}, 0xffff")
    a(f"s_mov_b32 s{dst+2}, {nbytes}")
    a(f"s_mov_b32 s{dst+3}, 0x00020000")
```

```python
from asmlib import *
import struct, math

WS_XN    = 0x0000000
WS_O     = 0x0400000
WS_HC    = 0x0800000
WS_HH    = 0x0C00000
WS_XMEAN = 0x1A00000
WS_RBAR  = 0x1A02000
WS_HM    = 0x1A04000
WS_SSQ   = 0x1A10000
WS_KVP   = 0x1A40000
KVP_STRIDE = 8448
WS_STAMP = 0x8000000
WS_SIZE  = 0x10000000

LOG2E = 1.4426950408889634
def f2u(x): return struct.unpack("<I", struct.pack("<f", x))[0]
def lcm(a, b): return a*b//math.gcd(a, b)

def srd_off(a, dst, base_lo, off, nbytes):
    a(f"s_add_u32 s{dst}, s{base_lo}, {off}")
    a(f"s_addc_u32 s{dst+1}, s{base_lo+1}, 0")
    a(f"s_and_b32 s{dst+1}, s{dst+1}, 0xffff")
    a(f"s_mov_b32 s{dst+2}, {nbytes}")
    a(f"s_mov_b32 s{dst+3}, 0x00020000")

def stamp_begin(a):
    a("s_memrealtime s[90:91]")
    a("s_memtime s[92:93]")
def stamp_mid(a, i):
    a(f"s_memtime s[{80+2*i}:{81+2*i}]")
    a(f"s_memrealtime s[{66+2*i}:{67+2*i}]")
def stamp_end(a, ws_lo, wave_sgpr, v, kidx=0):
    a("s_waitcnt vmcnt(0)")
    a("s_memrealtime s[94:95]")
    a("s_memtime s[96:97]")
    a("s_getreg_b32 s74, hwreg(HW_REG_XCC_ID)")
    a("s_getreg_b32 s75, hwreg(HW_REG_HW_ID)")
    a("s_waitcnt lgkmcnt(0)")
    a("s_mov_b64 exec, -1")
    for i, s in enumerate([90,91,94,95,92,93,96,97,80,81,82,83,84,85,86,87,66,67,68,69,70,71,72,73,74,75]):
        a(f"v_mov_b32 v{v+i}, s{s}")
    srd_off(a, 76, ws_lo, hex(WS_STAMP + kidx*0x40000), 0x40000)
    a(f"s_lshl_b32 s75, s2, 3")
    a(f"s_add_u32 s75, s75, s{wave_sgpr}")
    a(f"s_lshl_b32 s75, s75, 7")
    a(f"v_mov_b32 v{v+28}, s75")
    a(f"v_and_b32 v{v+29}, 63, v0")
    a(f"v_cmp_eq_u32 vcc, 0, v{v+29}")
    a("s_and_saveexec_b64 s[98:99], vcc")
    for i in range(7):
        a(f"buffer_store_dwordx4 v[{v+4*i}:{v+4*i+3}], v{v+28}, s[76:79], 0 offen offset:{16*i}")
    a("s_waitcnt vmcnt(0)")

def tile_decode(a, MT, NT, XM, smt, snt, t0=22):
    XN = (MT*NT//8) // XM
    nbn = NT // XN
    assert (MT//XM)*nbn == 8
    a(f"s_and_b32 s{t0}, s2, 7")
    a(f"s_lshr_b32 s{t0+1}, s2, 3")
    a(f"s_lshr_b32 s{smt}, s{t0}, {int(math.log2(nbn))}")
    a(f"s_and_b32 s{snt}, s{t0}, {nbn-1}")
    a(f"s_lshr_b32 s{t0+2}, s{t0+1}, {int(math.log2(XN))}")
    a(f"s_and_b32 s{t0+3}, s{t0+1}, {XN-1}")
    a(f"s_mul_i32 s{smt}, s{smt}, {XM}")
    a(f"s_add_u32 s{smt}, s{smt}, s{t0+2}")
    a(f"s_mul_i32 s{snt}, s{snt}, {XN}")
    a(f"s_add_u32 s{snt}, s{snt}, s{t0+3}")

class Gemm:
    def __init__(s, a, NB, SB, KS, R, AD, NSUB, PW, label, n_pre=0):
        s.a, s.NB, s.SB, s.KS, s.R, s.AD, s.NSUB, s.PW, s.label = a, NB, SB, KS, R, AD, NSUB, PW, label
        s.L = lcm(KS, AD)
        assert NSUB % s.L == 0
        s.seq = []
    def pieces_in(s, u):
        out = []
        for i in range(s.PW):
            j = (i*s.KS)//s.PW
            if (u + 1 - j) % s.KS == 0:
                Tp = (u + 1 - j)//s.KS
                out.append((Tp - 2 + s.R, i))
        return out
    def ops_in(s, u):
        acts = [("act", u + s.AD - 1, sb) for sb in range(s.SB)]
        dm = [("dma",)+p for p in s.pieces_in(u)]
        out = []
        while acts or dm:
            if acts: out.append(acts.pop(0))
            if dm: out.append(dm.pop(0))
        return out
    def needed_at_end(s, u):
        need = [("act", u+1, sb) for sb in range(s.SB)]
        if (u + 2) % s.KS == 0:
            T = (u + 2)//s.KS
            need += [("dma", T, i) for i in range(s.PW)]
        return need
    def steady_wait(s, u):
        base = u % s.L + 8*s.L*s.R
        seq = []
        for v in range(base - 4*s.L*s.R, base + 1): seq += s.ops_in(v)
        need = s.needed_at_end(base)
        last = max(seq.index(n) for n in need)
        return len(seq) - 1 - last
    def emit_op(s, op):
        if op[0] == "act": s.actload(op[1] % s.AD, op[2])
        else: s.dma(op[2])
    def wait_for(s, need):
        last = max(s.seq.index(n) for n in need)
        return len(s.seq) - 1 - last
    def prologue_loads(s):
        allops = []
        for v in range(-4*s.L*s.R, 0):
            allops += [o for o in s.ops_in(v) if o[1] >= 0]
        dm = [o for o in allops if o[0] == "dma"]; ac = [o for o in allops if o[0] == "act"]
        key = lambda o: (s.KS*o[1] - 1.5) if o[0] == "dma" else o[1]
        order = sorted(dm + ac, key=key)
        for o in order:
            s.emit_op(o); s.seq.append(o)
    def prologue_sync(s):
        a = s.a
        a(f"s_waitcnt vmcnt({min(63, s.wait_for([('dma', 0, i) for i in range(s.PW)]))})")
        a("s_barrier")
        for b in range(s.NB):
            s.trread(b, 0, 0); s.trread(b, 1, 0)
        s.extra_reads(-1)
        need = s.needed_at_end(-1)
        if (1 % s.KS) == 0: s.adv_slot()
        a(f"s_waitcnt vmcnt({min(63, s.wait_for(need))})")
        if (1 % s.KS) == 0: a("s_barrier")
    def check(s):
        seq = list(s.seq)
        for u in range(s.NSUB):
            seq += s.ops_in(u)
            need = s.needed_at_end(u)
            last = max(seq.index(n) for n in need)
            req = len(seq) - 1 - last
            assert min(63, s.waits[u % s.L]) <= req, (u, s.waits[u % s.L], req)
    def extra_reads(s, i): pass
    def extra_mfma(s, i): pass
    def lgkm_before(s, b):
        n = 2*(s.NB-1) + s.n_extra
        if n <= 15: return n
        return None
    n_extra = 0
    def loop(s, scnt):
        a = s.a
        s.waits = [s.steady_wait(i) for i in range(s.L)]
        for _ in range(64):
            try:
                s.check(); break
            except AssertionError as e:
                u, w, req = e.args[0]
                s.waits[u % s.L] = req
        s.check()
        a(f"s_mov_b32 s{scnt}, 0")
        a.label(s.label)
        for i in range(s.L):
            ops = s.ops_in(i)
            pos = {}
            for j, op in enumerate(ops):
                pos.setdefault((j*s.NB)//len(ops), []).append(op)
            ks_next = (i+1) % s.KS
            for b in range(s.NB):
                w = s.lgkm_before(b)
                if w is not None: a(f"s_waitcnt lgkmcnt({w})")
                for sb in range(s.SB):
                    s.mfma(b, sb, i % s.AD)
                    if sb == 0:
                        for op in pos.get(b, []): s.emit_op(op)
                s.trread(b, 0, ks_next); s.trread(b, 1, ks_next)
            s.extra_mfma(i)
            s.extra_reads(i)
            bar = (i + 2) % s.KS == 0
            if bar: s.adv_slot()
            if i == s.L-1: s.iter_end()
            a(f"s_waitcnt vmcnt({min(63, s.waits[i])})")
            if bar: a("s_barrier")
        a(f"s_add_u32 s{scnt}, s{scnt}, 1")
        a(f"s_cmp_lt_u32 s{scnt}, {s.NSUB//s.L}")
        a(f"s_cbranch_scc1 {s.label}")
    def iter_end(s): pass
```

```python
from common import *

def vr(i, n): return f"v[{i}:{i+n-1}]" if n > 1 else f"v{i}"
def ar(i, n): return f"a[{i}:{i+n-1}]" if n > 1 else f"a{i}"

def dpp_sum16(a, regs, tmp_unused=None):
    for ctl in ("quad_perm:[1,0,3,2]", "quad_perm:[2,3,0,1]", "row_half_mirror", "row_mirror"):
        a("s_nop 1")
        for r in regs:
            a(f"v_add_f32_dpp v{r}, v{r}, v{r} {ctl} row_mask:0xf bank_mask:0xf")

def swap_reduce(a, regs, tmps, kind, op="v_add_f32"):
    for r, t in zip(regs, tmps): a(f"v_mov_b32 v{t}, v{r}")
    a("s_nop 1")
    for r, t in zip(regs, tmps): a(f"v_permlane{kind}_swap_b32 v{r}, v{t}")
    a("s_nop 0")
    for r, t in zip(regs, tmps): a(f"{op} v{r}, v{r}, v{t}")

def gen_ln1(name="ln1_kernel", stamps=False, prefetch=True):
    a = Asm()
    a("s_cmp_ge_u32 s2, 256")
    a("s_cbranch_scc1 L_ln_end")
    if stamps: stamp_begin(a)
    a("s_load_dwordx4 s[4:7], s[0:1], 0")
    a("s_load_dwordx2 s[8:9], s[0:1], 24")
    a("s_load_dwordx2 s[20:21], s[0:1], 80")
    a("v_lshrrev_b32 v1, 6, v0")
    a("v_and_b32 v2, 63, v0")
    a("v_readfirstlane_b32 s28, v1")
    a("v_lshrrev_b32 v3, 5, v2")
    a("v_and_b32 v4, 31, v2")
    a("s_lshl_b32 s29, s2, 3")
    a("s_lshl_b32 s30, s28, 1")
    a("s_add_u32 s29, s29, s30")
    a("v_add_u32 v5, s29, v3")
    a("v_lshlrev_b32 v6, 11, v5")
    a("v_lshl_add_u32 v6, v4, 4, v6")
    a("s_lshl_b32 s31, s2, 2")
    a("s_add_u32 s31, s31, s28")
    a("s_lshl_b32 s32, s31, 11")
    a("v_lshlrev_b32 v7, 4, v2")
    a("s_waitcnt lgkmcnt(0)")
    srd(a, 12, 4, 2048*2048)
    srd(a, 16, 8, 1024*2048)
    srd(a, 24, 6, 1024*6144)
    for i in range(4):
        a(f"buffer_load_dwordx4 v[{16+4*i}:{19+4*i}], v6, s[12:15], 0 offen offset:{512*i}")
    a("buffer_load_dwordx4 v[32:35], v7, s[16:19], s32 offen")
    a("buffer_load_dwordx4 v[36:39], v7, s[16:19], s32 offen offset:1024")
    nextra = 0
    if prefetch:
        a("s_mul_i32 s33, s2, 192")
        a("s_lshl_b32 s34, s28, 6")
        a("s_add_u32 s33, s33, s34")
        a("s_lshl_b32 s33, s33, 7")
        a("s_cmp_eq_u32 s28, 3")
        a("s_cselect_b32 s33, 0x10000000, s33")
        a("v_lshlrev_b32 v8, 7, v2")
        a("buffer_load_dword v9, v8, s[24:27], s33 offen")
        nextra = 1
    a(f"s_mul_i32 s35, s2, {KVP_STRIDE}")
    a(f"s_add_u32 s35, s35, {hex(WS_KVP)}")
    srd_off(a, 36, 20, "s35", KVP_STRIDE)
    a("v_mov_b32 v12, -1"); a("v_mov_b32 v13, -1"); a("v_mov_b32 v14, -1"); a("v_mov_b32 v15, -1")
    a("v_lshlrev_b32 v10, 4, v0")
    a("s_movk_i32 s40, 4096"); a("s_movk_i32 s41, 8192")
    a("buffer_store_dwordx4 v[12:15], v10, s[36:39], 0 offen")
    a("buffer_store_dwordx4 v[12:15], v10, s[36:39], s40 offen")
    a("buffer_store_dwordx4 v[12:15], v10, s[36:39], s41 offen")
    a(f"s_waitcnt vmcnt({5+nextra})")
    X = 48
    for i in range(16):
        a(f"v_lshlrev_b32 v{X+2*i}, 16, v{16+i}")
        a(f"v_and_b32 v{X+2*i+1}, 0xffff0000, v{16+i}")
    for i in range(8): a(f"v_add_f32 v{80+i}, v{X+4*i}, v{X+4*i+1}")
    for i in range(8): a(f"v_add_f32 v{88+i}, v{X+4*i+2}, v{X+4*i+3}")
    for i in range(8): a(f"v_add_f32 v{80+i}, v{80+i}, v{88+i}")
    for i in range(4): a(f"v_add_f32 v{80+i}, v{80+i}, v{84+i}")
    for i in range(2): a(f"v_add_f32 v{80+i}, v{80+i}, v{82+i}")
    a("v_add_f32 v80, v80, v81")
    a(f"s_waitcnt vmcnt({3+nextra})")
    for i in range(8):
        a(f"v_lshlrev_b32 v{96+2*i}, 16, v{32+i}")
        a(f"v_and_b32 v{96+2*i+1}, 0xffff0000, v{32+i}")
    for i in range(8): a(f"v_add_f32 v{96+i}, v{96+i}, v{104+i}")
    for i in range(4): a(f"v_add_f32 v{96+i}, v{96+i}, v{100+i}")
    for i in range(2): a(f"v_add_f32 v{96+i}, v{96+i}, v{98+i}")
    a("v_add_f32 v96, v96, v97")
    dpp_sum16(a, [80, 96])
    swap_reduce(a, [80, 96], [81, 97], 16)
    swap_reduce(a, [96], [97], 32)
    a(f"s_mov_b32 s42, {hex(f2u(1.0/1024))}")
    a("v_mul_f32 v80, s42, v80")
    a("v_mul_f32 v96, s42, v96")
    for i in range(32): a(f"v_sub_f32 v{X+i}, v{X+i}, v80")
    for i in range(4): a(f"v_mul_f32 v{84+i}, v{X+i}, v{X+i}")
    for i in range(4, 32): a(f"v_fmac_f32 v{84+i%4}, v{X+i}, v{X+i}")
    a("v_add_f32 v84, v84, v85"); a("v_add_f32 v86, v86, v87"); a("v_add_f32 v84, v84, v86")
    dpp_sum16(a, [84])
    swap_reduce(a, [84], [85], 16)
    a(f"v_mov_b32 v85, {hex(f2u(1e-5))}")
    a("v_fma_f32 v84, v84, s42, v85")
    a("v_rsq_f32 v84, v84")
    a("s_nop 0")
    for i in range(32): a(f"v_mul_f32 v{X+i}, v{X+i}, v84")
    for i in range(16): a(f"v_cvt_pk_bf16_f32 v{16+i}, v{X+2*i}, v{X+2*i+1}")
    a("v_lshrrev_b32 v40, 2, v4")
    a("v_and_b32 v41, 1, v4")
    a("v_bfe_u32 v42, v4, 1, 1")
    a("v_lshlrev_b32 v40, 2, v40")
    a("v_lshl_add_u32 v40, v41, 1, v40")
    a("v_mul_u32_u24 v40, 144, v40")
    a("v_lshl_add_u32 v40, v42, 3, v40")
    a("v_add_u32 v43, s30, v3")
    a("v_lshl_add_u32 v40, v43, 4, v40")
    for i in range(4):
        for e in range(2):
            a(f"ds_write_b64 v40, v[{16+4*i+2*e}:{17+4*i+2*e}] offset:{(i*32+e)*144}")
    srd_off(a, 44, 20, hex(WS_XMEAN), 0x4000)
    a("v_lshlrev_b32 v44, 2, v5")
    a("v_cmp_eq_u32 vcc, 0, v4")
    a("s_and_saveexec_b64 s[48:49], vcc")
    a("buffer_store_dword v80, v44, s[44:47], 0 offen")
    a("s_lshr_b32 s50, s31, 5"); a("s_lshl_b32 s50, s50, 6")
    a("s_bfe_u32 s51, s31, 0x20002"); a("s_lshl_b32 s51, s51, 4"); a("s_add_u32 s50, s50, s51")
    a("s_bfe_u32 s51, s31, 0x10004"); a("s_lshl_b32 s51, s51, 3"); a("s_add_u32 s50, s50, s51")
    a("s_and_b32 s51, s31, 3"); a("s_lshl_b32 s51, s51, 1"); a("s_add_u32 s50, s50, s51")
    a("s_add_u32 s50, s50, 0x2000")
    a("v_cvt_pk_bf16_f32 v96, v96, v96")
    a("v_mov_b32 v45, 0")
    a("s_mov_b64 exec, 1")
    a("buffer_store_short v96, v45, s[44:47], s50 offen")
    a("s_mov_b64 exec, -1")
    a("s_waitcnt lgkmcnt(0)")
    a("s_barrier")
    a("v_lshrrev_b32 v40, 3, v0")
    a("v_and_b32 v41, 7, v0")
    a("v_mul_u32_u24 v42, 144, v40")
    a("v_lshl_add_u32 v42, v41, 4, v42")
    for i in range(4):
        a(f"ds_read_b128 v[{16+4*i}:{19+4*i}], v42 offset:{i*32*144}")
    a("s_lshr_b32 s50, s2, 2"); a("s_lshl_b32 s50, s50, 16")
    a("s_bfe_u32 s51, s2, 0x10001"); a("s_lshl_b32 s51, s51, 10"); a("s_add_u32 s50, s50, s51")
    a("s_and_b32 s51, s2, 1"); a("s_lshl_b32 s51, s51, 7"); a("s_add_u32 s50, s50, s51")
    srd_off(a, 52, 20, hex(WS_XN), 0x400000)
    a("v_lshrrev_b32 v43, 2, v40")
    a("v_and_b32 v44, 3, v40")
    a("v_lshlrev_b32 v43, 11, v43")
    a("v_lshl_add_u32 v43, v44, 8, v43")
    a("v_lshl_add_u32 v43, v41, 4, v43")
    for i in range(4):
        a(f"s_waitcnt lgkmcnt({3-i})")
        a(f"buffer_store_dwordx4 v[{16+4*i}:{19+4*i}], v43, s[52:55], s50 offen")
        a(f"s_add_u32 s50, s50, {8*2048}")
    if stamps: stamp_end(a, 20, 28, 48, 0)
    a.label("L_ln_end")
    a("s_endpgm")
    return kernel_text(name, a.text(), 112), (name, (256,1,1), (256,1,1), 128*144)

def gen_nn(kind, stamps=False, R=5, AD=8, XM=4):
    wo = kind == "wo"
    name = kind + "_kernel"
    a = Asm()
    NB, SB, KS, PW = 4, 2, 4, 4
    NSUB = 32 if wo else 112
    STG = 16384
    ACC = 32; WF = 72; AR = 96
    RES = 16
    LRB = STG*R
    a("s_cmp_ge_u32 s2, 256")
    a(f"s_cbranch_scc1 L_{kind}_end")
    if stamps: stamp_begin(a)
    a(f"s_load_dwordx2 s[4:5], s[0:1], {24 if wo else 56}")
    a(f"s_load_dwordx2 s[6:7], s[0:1], {0 if wo else 64}")
    a("s_load_dwordx2 s[20:21], s[0:1], 80")
    tile_decode(a, 16, 16, XM, 26, 27)
    a("v_lshrrev_b32 v1, 6, v0")
    a("v_and_b32 v8, 63, v0")
    a("v_readfirstlane_b32 s28, v1")
    a("v_lshlrev_b32 v1, 4, v8")
    a("s_lshl_b32 s29, s26, 2")
    a("s_add_u32 s29, s29, s28")
    a("v_lshrrev_b32 v9, 5, v8")
    a("v_bfe_u32 v10, v8, 2, 3")
    a("v_and_b32 v11, 3, v8")
    a("v_bfe_u32 v12, v8, 4, 1")
    a("v_lshlrev_b32 v12, 1, v12")
    a("v_xor_b32 v12, v12, v11")
    a("s_lshl_b32 s30, s28, 3")
    a("v_add_u32 v10, s30, v10")
    a("v_lshlrev_b32 v2, 11, v10")
    a("v_lshl_add_u32 v2, v9, 6, v2")
    a("v_lshl_add_u32 v2, v12, 4, v2")
    a("s_lshl_b32 s31, s27, 7")
    a("v_add_u32 v2, s31, v2")
    a("v_lshrrev_b32 v13, 4, v8")
    a("v_lshlrev_b32 v4, 10, v9")
    a("v_bfe_u32 v10, v8, 2, 3")
    a("v_lshl_add_u32 v4, v10, 6, v4")
    a("v_lshl_add_u32 v4, v11, 3, v4")
    a("v_and_b32 v12, 1, v13")
    a("v_xor_b32 v14, 1, v12")
    a("v_lshl_add_u32 v5, v14, 5, v4")
    a("v_lshl_add_u32 v4, v12, 5, v4")
    a("s_waitcnt lgkmcnt(0)")
    srd(a, 12, 4, (1024 if wo else 3584)*2048)
    ASTR = NSUB*2048
    a(f"s_mul_i32 s35, s29, {ASTR}")
    a(f"s_add_u32 s35, s35, {hex(WS_O if wo else WS_HH)}")
    srd_off(a, 8, 20, "s35", ASTR)
    srd(a, 16, 6, 2048*2048)
    srd_off(a, 36, 20, hex(WS_XMEAN), 0x40000)
    a("v_and_b32 v15, 15, v8")
    a("s_lshl_b32 s32, s29, 5")
    a("v_add_u32 v15, s32, v15")
    a("v_lshlrev_b32 v3, 11, v15")
    a("v_add_u32 v3, s31, v3")

    g = Gemm(a, NB, SB, KS, R, AD, NSUB, PW, f"L_{kind}_loop")
    a("s_lshl_b32 s44, s28, 10")
    def dma(i):
        a(f"s_add_u32 m0, s42, {i*4096}")
        if i == PW-1: a(f"s_add_u32 s42, s42, {STG}")
        else: a("s_nop 0")
        a(f"buffer_load_dwordx4 v2, s[12:15], s40 offen lds")
        a(f"s_add_u32 s40, s40, {32*2048}")
        if i == PW-1:
            a(f"s_cmp_ge_u32 s42, {STG*R}")
            a(f"s_cselect_b32 s45, {STG*R}, 0")
            a(f"s_sub_u32 s42, s42, s45")
    def actload(slot, sb):
        r = AR + (slot*SB + sb)*4
        a(f"buffer_load_dwordx4 {vr(r,4)}, v1, s[8:11], s46 offen offset:{sb*1024}")
        if sb == SB-1: a("s_add_u32 s46, s46, 2048")
    def trread(b, q, ks):
        base = 6 + (b & 1)
        off = (4*ks + 2*q)*1024 + (b>>1)*512
        a(f"ds_read_b64_tr_b16 {vr(WF+4*b+2*q,2)}, v{base} offset:{off}")
    def adv_slot():
        a(f"s_add_u32 s48, s48, {STG}")
        a(f"s_cmp_ge_u32 s48, {STG*R}")
        a(f"s_cselect_b32 s48, 0, s48")
        a("v_add_u32 v6, s48, v4")
        a("v_add_u32 v7, s48, v5")
    def mfma(b, sb, slot):
        o = ACC + (b*SB + sb)*4; r = AR + (slot*SB + sb)*4
        a(f"v_mfma_f32_16x16x32_bf16 {vr(o,4)}, {vr(WF+4*b,4)}, {vr(r,4)}, {vr(o,4)}")
    g.dma, g.actload, g.trread, g.adv_slot, g.mfma = dma, actload, trread, adv_slot, mfma
    a("s_mov_b32 s40, 0"); a("s_mov_b32 s42, s44"); a("s_mov_b32 s46, 0"); a("s_mov_b32 s48, 0")
    if wo:
        a("s_and_b32 s33, s28, 1")
        a("s_lshl_b32 s33, s33, 10")
        a(f"s_add_u32 m0, s33, {LRB}")
        a("s_add_u32 s33, s33, 0x2000")
        a("buffer_load_dwordx4 v1, s[36:39], s33 offen lds")
        g.n_extra = 1
        a("v_lshlrev_b32 v92, 4, v13")
        a(f"v_add_u32 v92, {LRB}, v92")
        def extra_mfma(i):
            a("s_waitcnt lgkmcnt(8)")
            for sb in range(SB):
                o = 64 + 4*sb; r = AR + ((i % AD)*SB + sb)*4
                a(f"v_mfma_f32_16x16x32_bf16 {vr(o,4)}, v[88:91], {vr(r,4)}, {vr(o,4)}")
        def extra_reads(i):
            a(f"ds_read_b128 v[88:91], v92 offset:{(i+1)*64}")
        def iter_end():
            a(f"v_add_u32 v92, {g.L*64}, v92")
        g.extra_mfma, g.extra_reads, g.iter_end = extra_mfma, extra_reads, iter_end
    g.prologue_loads()
    if wo:
        a("v_lshl_add_u32 v93, v13, 3, v3")
        a("s_mov_b32 s33, 32768")
        for sb in range(SB):
            for nb in range(NB):
                r = RES + (sb*NB + nb)*2
                a(f"buffer_load_dwordx2 {vr(r,2)}, v93, s[16:19], {'s33' if sb else '0'} offen offset:{nb*32}")
                g.seq.append(("res", sb, nb))
        a("v_lshlrev_b32 v94, 2, v15")
        a("buffer_load_dword v95, v94, s[36:39], 0 offen")
        a("buffer_load_dword v94, v94, s[36:39], 0 offen offset:64")
        g.seq += [("res","m",0), ("res","m",1)]
    else:
        a("s_lshr_b32 s33, s29, 1"); a("s_lshl_b32 s33, s33, 17")
        a("s_lshl_b32 s34, s27, 13"); a("s_add_u32 s33, s33, s34")
        a("s_and_b32 s34, s29, 1"); a("s_lshl_b32 s34, s34, 11"); a("s_add_u32 s33, s33, s34")
        a(f"s_add_u32 s33, s33, {hex(WS_HC)}")
        srd_off(a, 52, 20, "s33", 8192)
        a("s_movk_i32 s33, 4096")
        for sb in range(SB):
            for pr in range(2):
                r = RES + (sb*2 + pr)*4
                a(f"buffer_load_dwordx4 {vr(r,4)}, v1, s[52:55], {'s33' if pr else '0'} offen offset:{sb*1024}")
                g.seq.append(("res", sb, pr))
        a("v_lshlrev_b32 v94, 2, v15")
        a("s_movk_i32 s33, 0x4000")
        a("buffer_load_dword v95, v94, s[36:39], s33 offen")
        a("buffer_load_dword v94, v94, s[36:39], s33 offen offset:64")
        g.seq += [("res","m",0), ("res","m",1)]
    for i in range(40 if wo else 32): a(f"v_mov_b32 v{ACC+i}, 0")
    a("v_mov_b32 v6, v4"); a("v_mov_b32 v7, v5")
    g.prologue_sync()
    if stamps: stamp_mid(a, 0)
    g.loop(49)
    if stamps: stamp_mid(a, 1)
    a("s_nop 7")
    T = 96
    a("s_waitcnt vmcnt(0)")
    M = [95, 94]
    if wo:
        for sb in range(SB):
            a(f"v_add_f32 v{M[sb]}, v{M[sb]}, v{64+4*sb}")
        for sb in range(SB):
            for nb in range(NB):
                o = ACC + (nb*SB + sb)*4; r = RES + (sb*NB + nb)*2
                a(f"v_lshlrev_b32 v{T}, 16, v{r}"); a(f"v_and_b32 v{T+1}, 0xffff0000, v{r}")
                a(f"v_lshlrev_b32 v{T+2}, 16, v{r+1}"); a(f"v_and_b32 v{T+3}, 0xffff0000, v{r+1}")
                for j in range(4): a(f"v_add_f32 v{o+j}, v{o+j}, v{T+j}")
                for j in range(4): a(f"v_sub_f32 v{o+j}, v{o+j}, v{M[sb]}")
                for j in range(4):
                    if nb == 0 and j == 0: a(f"v_mul_f32 v{T+8+sb}, v{o}, v{o}")
                    else: a(f"v_fmac_f32 v{T+8+sb}, v{o+j}, v{o+j}")
        a("s_lshr_b32 s33, s29, 1"); a("s_lshl_b32 s33, s33, 17")
        a("s_lshl_b32 s34, s27, 13"); a("s_add_u32 s33, s33, s34")
        a("s_and_b32 s34, s29, 1"); a("s_lshl_b32 s34, s34, 11"); a("s_add_u32 s33, s33, s34")
        a(f"s_add_u32 s33, s33, {hex(WS_HC)}")
        srd_off(a, 52, 20, "s33", 8192)
        a("s_movk_i32 s33, 4096")
        for sb in range(SB):
            for pr in range(2):
                t = T + 16 + (sb*2+pr)*4
                for h in range(2):
                    o = ACC + ((2*pr+h)*SB + sb)*4
                    a(f"v_cvt_pk_bf16_f32 v{t+2*h}, v{o}, v{o+1}")
                    a(f"v_cvt_pk_bf16_f32 v{t+2*h+1}, v{o+2}, v{o+3}")
                a(f"buffer_store_dwordx4 {vr(t,4)}, v1, s[52:55], {'s33' if pr else '0'} offen offset:{sb*1024}")
        swap_reduce(a, [T+8, T+9], [T+10, T+11], 16)
        swap_reduce(a, [T+8, T+9], [T+10, T+11], 32)
        a("v_lshlrev_b32 v93, 6, v15")
        a("s_lshl_b32 s33, s27, 2")
        a("s_add_u32 s33, s33, 0x10000")
        a("v_lshlrev_b32 v92, 2, v15")
        a("s_movk_i32 s34, 0x4000")
        a("s_mov_b64 exec, 0xffff")
        a(f"buffer_store_dword v{T+8}, v93, s[36:39], s33 offen")
        a(f"buffer_store_dword v{T+9}, v93, s[36:39], s33 offen offset:1024")
        a("s_cmp_eq_u32 s27, 0")
        a("s_cbranch_scc0 L_wo_nohm")
        a(f"buffer_store_dword v{M[0]}, v92, s[36:39], s34 offen")
        a(f"buffer_store_dword v{M[1]}, v92, s[36:39], s34 offen offset:64")
        a.label("L_wo_nohm")
    else:
        a("v_and_b32 v12, 1, v13"); a("v_lshrrev_b32 v14, 1, v13")
        a("v_lshl_add_u32 v3, v12, 5, v3")
        a("v_lshl_add_u32 v3, v14, 4, v3")
        a("s_mov_b32 s33, 32768")
        for sb in range(SB):
            for pr in range(2):
                r = RES + (sb*2+pr)*4
                t = T + 16 + (sb*2+pr)*4
                for h in range(2):
                    o = ACC + ((2*pr+h)*SB + sb)*4
                    a(f"v_lshlrev_b32 v{T}, 16, v{r+2*h}"); a(f"v_and_b32 v{T+1}, 0xffff0000, v{r+2*h}")
                    a(f"v_lshlrev_b32 v{T+2}, 16, v{r+2*h+1}"); a(f"v_and_b32 v{T+3}, 0xffff0000, v{r+2*h+1}")
                    for j in range(4): a(f"v_add_f32 v{o+j}, v{o+j}, v{M[sb]}")
                    for j in range(4): a(f"v_add_f32 v{o+j}, v{o+j}, v{T+j}")
                    a(f"v_cvt_pk_bf16_f32 v{t+2*h}, v{o}, v{o+1}")
                    a(f"v_cvt_pk_bf16_f32 v{t+2*h+1}, v{o+2}, v{o+3}")
                a("s_nop 1")
                a(f"v_permlane16_swap_b32 v{t}, v{t+2}")
                a(f"v_permlane16_swap_b32 v{t+1}, v{t+3}")
                a(f"buffer_store_dwordx4 {vr(t,4)}, v3, s[16:19], {'s33' if sb else '0'} offen offset:{pr*64}")
    if stamps:
        stamp_mid(a, 2)
        stamp_end(a, 20, 28, 96, 2 if wo else 4)
    a.label(f"L_{kind}_end")
    a("s_endpgm")
    nv = AR + AD*SB*4
    return kernel_text(name, a.text(), max(nv, 128+2)), (name, (256,1,1), (256,1,1), STG*R + 2048 + 64)
```

```python
from kernels import *

def gen_up(stamps=False, NW=4, R=6, AD=4, XM=4):
    name = "up_kernel"
    a = Asm()
    NB = 14; SB = 16 // NW; PW = 16 // NW; KS = 1
    NACC = NB*SB*4
    STG = 16384
    use_agpr = (NW == 4)
    ACC = 32
    if use_agpr:
        fr = ar; WF = 0; AR = 56; nagpr = AR + AD*SB*4
    else:
        fr = vr; WF = ACC + NACC; AR = WF + 56
        assert AR + AD*SB*4 <= 256
    def acc(b, sb): return ACC + (b*SB + sb)*4
    a("s_cmp_ge_u32 s2, 256")
    a("s_cbranch_scc1 L_up_end")
    if stamps: stamp_begin(a)
    a("s_load_dwordx4 s[4:7], s[0:1], 40")
    a("s_load_dwordx2 s[20:21], s[0:1], 80")
    tile_decode(a, 8, 32, XM, 26, 27)
    a("v_lshrrev_b32 v1, 6, v0")
    a("v_and_b32 v8, 63, v0")
    a("v_readfirstlane_b32 s28, v1")
    a("v_lshlrev_b32 v1, 4, v8")
    a("s_lshl_b32 s29, s26, 4")
    a(f"s_mul_i32 s30, s28, {SB}")
    a("s_add_u32 s29, s29, s30")
    KGW = PW // 2
    a("v_lshrrev_b32 v9, 4, v8")
    a("v_bfe_u32 v10, v8, 2, 2")
    a("v_and_b32 v11, 3, v8")
    a(f"s_mul_i32 s30, s28, {4*KGW}")
    a("v_add_u32 v10, s30, v10")
    a("s_movk_i32 s31, 7168")
    a("v_mul_lo_u32 v2, v10, s31")
    a("s_mul_i32 s32, s27, 224")
    a("s_and_b32 s32, s32, 0xffffffc0")
    a("v_lshl_add_u32 v2, v9, 6, v2")
    a("v_add_u32 v2, s32, v2")
    if KGW == 2:
        a("v_xor_b32 v12, 2, v11")
        a("v_lshl_add_u32 v3, v12, 4, v2")
        a(f"v_add_u32 v3, {4*7168}, v3")
        a("v_lshl_add_u32 v2, v11, 4, v2")
    else:
        a("s_and_b32 s33, s28, 1")
        a("s_lshl_b32 s33, s33, 1")
        a("v_xor_b32 v12, s33, v11")
        a("v_lshl_add_u32 v2, v12, 4, v2")
    a("v_bfe_u32 v10, v8, 2, 2")
    a("v_lshlrev_b32 v4, 11, v9")
    a("v_lshl_add_u32 v4, v10, 6, v4")
    a("v_lshl_add_u32 v4, v11, 3, v4")
    a("v_and_b32 v12, 1, v9")
    a("s_and_b32 s33, s27, 1")
    a("v_xor_b32 v13, s33, v12")
    a("v_xor_b32 v14, 1, v13")
    a("v_lshl_add_u32 v5, v14, 5, v4")
    a("s_lshl_b32 s34, s33, 8")
    a("v_add_u32 v5, s34, v5")
    a("v_lshl_add_u32 v4, v13, 5, v4")
    a("s_waitcnt lgkmcnt(0)")
    srd(a, 12, 4, 1024*7168)
    srd(a, 16, 6, 1024*7168)
    a("s_lshr_b32 s35, s29, 2")
    a("s_lshl_b32 s35, s35, 17")
    a("s_and_b32 s36, s29, 3")
    a("s_lshl_b32 s36, s36, 10")
    a("s_add_u32 s35, s35, s36")
    a(f"s_add_u32 s35, s35, {hex(WS_HC)}")
    srd_off(a, 8, 20, "s35", 131072)
    a("s_sub_u32 s10, s10, s36")
    a(f"s_mul_i32 s44, s28, {KGW*2048}")
    g = Gemm(a, NB, SB, KS, R, AD, 32, PW, "L_up_loop")
    def dma(i):
        kgl, mat = i // 2, i % 2
        a(f"s_add_u32 m0, s42, {kgl*2048 + mat*1024}")
        if i == PW-1: a(f"s_add_u32 s42, s42, {STG}")
        else: a("s_nop 0")
        a(f"buffer_load_dwordx4 v{2+kgl}, s[{12+4*mat}:{15+4*mat}], s40 offen lds")
        if i == PW-1:
            a(f"s_add_u32 s40, s40, {32*7168}")
            a(f"s_cmp_ge_u32 s42, {STG*R}")
            a(f"s_cselect_b32 s45, {STG*R}, 0")
            a(f"s_sub_u32 s42, s42, s45")
    def actload(slot, sb):
        r = AR + (slot*SB + sb)*4
        a(f"buffer_load_dwordx4 {fr(r,4)}, v1, s[8:11], s46 offen offset:{sb*1024}")
        if sb == SB-1: a("s_add_u32 s46, s46, 4096")
    def trread(b, q, ks):
        hb, mat = b // 2, b % 2
        base = 6 if hb % 2 == 0 else 7
        off = 4*q*2048 + mat*1024 + (hb>>1)*256
        a(f"ds_read_b64_tr_b16 {fr(WF+4*b+2*q,2)}, v{base} offset:{off}")
    def adv_slot():
        a(f"s_add_u32 s48, s48, {STG}")
        a(f"s_cmp_ge_u32 s48, {STG*R}")
        a(f"s_cselect_b32 s48, 0, s48")
        a("v_add_u32 v6, s48, v4")
        a("v_add_u32 v7, s48, v5")
    def mfma(b, sb, slot):
        o = acc(b, sb); r = AR + (slot*SB + sb)*4
        a(f"v_mfma_f32_16x16x32_bf16 {vr(o,4)}, {fr(WF+4*b,4)}, {fr(r,4)}, {vr(o,4)}")
    g.dma, g.actload, g.trread, g.adv_slot, g.mfma = dma, actload, trread, adv_slot, mfma
    g.lgkm_before = lambda b: (4 if b in (0, 7) else None)
    a("s_mov_b32 s40, 0"); a("s_mov_b32 s42, s44"); a("s_mov_b32 s46, 0"); a("s_mov_b32 s48, 0")
    g.prologue_loads()
    srd_off(a, 36, 20, hex(WS_SSQ), 2048*64)
    a("v_and_b32 v10, 15, v8")
    a("s_lshl_b32 s35, s29, 4")
    a("v_add_u32 v10, s35, v10")
    a("v_lshlrev_b32 v10, 6, v10")
    a("v_lshl_add_u32 v10, v9, 4, v10")
    for sb in range(SB):
        a(f"buffer_load_dwordx4 v[{16+4*sb}:{19+4*sb}], v10, s[36:39], 0 offen offset:{sb*1024}")
        g.seq.append(("res", sb))
    for i in range(NACC): a(f"v_mov_b32 v{ACC+i}, 0")
    a("v_mov_b32 v6, v4"); a("v_mov_b32 v7, v5")
    g.prologue_sync()
    if stamps: stamp_mid(a, 0)
    g.loop(49)
    if stamps: stamp_mid(a, 1)
    S = [16+4*sb for sb in range(SB)]
    for r in S:
        a(f"v_add_f32 v{r}, v{r}, v{r+1}"); a(f"v_add_f32 v{r+2}, v{r+2}, v{r+3}")
    for r in S: a(f"v_add_f32 v{r}, v{r}, v{r+2}")
    swap_reduce(a, S, [r+1 for r in S], 32)
    swap_reduce(a, S, [r+1 for r in S], 16)
    a(f"s_mov_b32 s50, {hex(f2u(1.0/1024))}")
    a(f"v_mov_b32 v15, {hex(f2u(1e-5))}")
    for r in S:
        a(f"v_fma_f32 v{r}, v{r}, s50, v15")
        a(f"v_rsq_f32 v{r+2}, v{r}")
        a("s_nop 0")
        a(f"v_mul_f32 v{r+2}, {hex(f2u(-LOG2E))}, v{r+2}")
    a("s_lshr_b32 s35, s29, 1")
    a("s_mul_i32 s35, s35, 112")
    a("s_mul_i32 s51, s27, 7")
    a("s_lshr_b32 s51, s51, 1")
    a("s_add_u32 s35, s35, s51")
    a("s_lshl_b32 s35, s35, 11")
    a(f"s_add_u32 s35, s35, {hex(WS_HH)}")
    srd_off(a, 52, 20, "s35", (SB//2-1)*112*2048 + 4*2048)
    a("s_nop 7")
    T = 8
    for sb in range(SB):
        r = S[sb]
        for hb in range(7):
            G = acc(2*hb, sb); U = acc(2*hb+1, sb)
            t = T + (hb % 2)*4
            for j in range(4): a(f"v_mul_f32 v{t+j}, v{G+j}, v{r+2}")
            for j in range(4): a(f"v_exp_f32 v{t+j}, v{t+j}")
            for j in range(4): a(f"v_mul_f32 v{G+j}, v{G+j}, v{U+j}")
            for j in range(4): a(f"v_fma_f32 v{t+j}, v{t+j}, v{r}, v{r}")
            for j in range(4): a(f"v_rcp_f32 v{t+j}, v{t+j}")
            a("s_nop 0")
            for j in range(4): a(f"v_mul_f32 v{G+j}, v{G+j}, v{t+j}")
            for j in (0, 2): a(f"v_cvt_pk_bf16_f32 v{U+j//2}, v{G+j}, v{G+j+1}")
        so = (sb//2)*112*2048 + (sb%2)*1024
        a(f"s_mov_b32 s56, {so}")
        a(f"s_mov_b32 s57, {so+4096}")
        lodd = a.newlabel("L_up_odd"); ldone = a.newlabel("L_up_done")
        a("s_cmp_eq_u32 s33, 1")
        a(f"s_cbranch_scc1 {lodd}")
        for par in (0, 1):
            if par == 1: a.label(lodd)
            hb = 0
            while hb < 7:
                e = hb + par
                U = acc(2*hb+1, sb)
                kb = e >> 1
                sreg = 56 + (kb >> 1); off = (kb & 1)*2048
                if e % 2 == 0 and hb+1 < 7:
                    U2 = acc(2*hb+3, sb)
                    a(f"v_mov_b32 v{U+2}, v{U2}"); a(f"v_mov_b32 v{U+3}, v{U2+1}")
                    a(f"buffer_store_dwordx4 v[{U}:{U+3}], v1, s[52:55], s{sreg} offen offset:{off}")
                    hb += 2
                else:
                    a(f"buffer_store_dwordx2 v[{U}:{U+1}], v1, s[52:55], s{sreg} offen offset:{off + (e&1)*8}")
                    hb += 1
            if par == 0: a(f"s_branch {ldone}")
        a.label(ldone)
    if stamps:
        stamp_mid(a, 2)
        stamp_end(a, 20, 28, 40, 3)
    a.label("L_up_end")
    a("s_endpgm")
    if use_agpr:
        return kernel_text(name, a.text(), 256+nagpr, accum=256), (name, (256,1,1), (64*NW,1,1), STG*R)
    return kernel_text(name, a.text(), 256), (name, (256,1,1), (64*NW,1,1), STG*R)

def softmax_pm(a, P, OUTP, OUTN, T):
    nb = len(P)
    MX = [T + 24*i for i in range(nb)]
    for i in range(nb):
        p = P[i]; m = MX[i]
        a(f"v_max3_f32 v{m}, v{p[0]}, v{p[1]}, v{p[2]}")
        a(f"v_min3_f32 v{m+1}, v{p[0]}, v{p[1]}, v{p[2]}")
        a(f"v_max3_f32 v{m+2}, v{p[3]}, v{p[4]}, v{p[5]}")
        a(f"v_min3_f32 v{m+3}, v{p[3]}, v{p[4]}, v{p[5]}")
        a(f"v_max3_f32 v{m}, v{m}, v{p[6]}, v{p[7]}")
        a(f"v_min3_f32 v{m+1}, v{m+1}, v{p[6]}, v{p[7]}")
        a(f"v_max_f32 v{m}, v{m}, v{m+2}")
        a(f"v_min_f32 v{m+1}, v{m+1}, v{m+3}")
    for kind in (32, 16):
        for i in range(nb):
            m = MX[i]
            a(f"v_mov_b32 v{m+2}, v{m}"); a(f"v_mov_b32 v{m+3}, v{m+1}")
        a("s_nop 1")
        for i in range(nb):
            m = MX[i]
            a(f"v_permlane{kind}_swap_b32 v{m}, v{m+2}"); a(f"v_permlane{kind}_swap_b32 v{m+1}, v{m+3}")
        a("s_nop 0")
        for i in range(nb):
            m = MX[i]
            a(f"v_max_f32 v{m}, v{m}, v{m+2}"); a(f"v_min_f32 v{m+1}, v{m+1}, v{m+3}")
    for i in range(nb):
        m = MX[i]
        a(f"v_mul_f32 v{m}, s60, v{m}"); a(f"v_mul_f32 v{m+1}, s60, v{m+1}")
    for i in range(nb):
        p = P[i]; m = MX[i]; E = m + 4; F = m + 12
        for j in range(8): a(f"v_fma_f32 v{E+j}, v{p[j]}, s60, -v{m}")
        for j in range(8): a(f"v_fma_f32 v{F+j}, -v{p[j]}, s60, v{m+1}")
        for j in range(8): a(f"v_exp_f32 v{E+j}, v{E+j}")
        for j in range(8): a(f"v_exp_f32 v{F+j}, v{F+j}")
    for i in range(nb):
        m = MX[i]; E = m + 4; F = m + 12
        a(f"v_add_f32 v{m}, v{E}, v{E+1}"); a(f"v_add_f32 v{m+1}, v{F}, v{F+1}")
        a(f"v_add_f32 v{m+2}, v{E+2}, v{E+3}"); a(f"v_add_f32 v{m+3}, v{F+2}, v{F+3}")
        a(f"v_add_f32 v{m+20}, v{E+4}, v{E+5}"); a(f"v_add_f32 v{m+21}, v{F+4}, v{F+5}")
        a(f"v_add_f32 v{m+22}, v{E+6}, v{E+7}"); a(f"v_add_f32 v{m+23}, v{F+6}, v{F+7}")
        a(f"v_add_f32 v{m}, v{m}, v{m+2}"); a(f"v_add_f32 v{m+1}, v{m+1}, v{m+3}")
        a(f"v_add_f32 v{m+20}, v{m+20}, v{m+22}"); a(f"v_add_f32 v{m+21}, v{m+21}, v{m+23}")
        a(f"v_add_f32 v{m}, v{m}, v{m+20}"); a(f"v_add_f32 v{m+1}, v{m+1}, v{m+21}")
    for kind in (32, 16):
        for i in range(nb):
            m = MX[i]
            a(f"v_mov_b32 v{m+2}, v{m}"); a(f"v_mov_b32 v{m+3}, v{m+1}")
        a("s_nop 1")
        for i in range(nb):
            m = MX[i]
            a(f"v_permlane{kind}_swap_b32 v{m}, v{m+2}"); a(f"v_permlane{kind}_swap_b32 v{m+1}, v{m+3}")
        a("s_nop 0")
        for i in range(nb):
            m = MX[i]
            a(f"v_add_f32 v{m}, v{m}, v{m+2}"); a(f"v_add_f32 v{m+1}, v{m+1}, v{m+3}")
    for i in range(nb):
        m = MX[i]
        a(f"v_rcp_f32 v{m}, v{m}"); a(f"v_rcp_f32 v{m+1}, v{m+1}")
    a("s_nop 0")
    for i in range(nb):
        m = MX[i]; E = m + 4; F = m + 12
        for j in range(8): a(f"v_mul_f32 v{E+j}, v{E+j}, v{m}")
        for j in range(8): a(f"v_mul_f32 v{F+j}, v{F+j}, v{m+1}")
        for j in range(4): a(f"v_cvt_pk_bf16_f32 v{OUTP[i]+j}, v{E+2*j}, v{E+2*j+1}")
        for j in range(4): a(f"v_cvt_pk_bf16_f32 v{OUTN[i]+j}, v{F+2*j}, v{F+2*j+1}")

def gen_qkv(stamps=False, R=4, AD=8, XM=4):
    name = "qkv_kernel"
    a = Asm()
    NB, SB, KS, PW = 6, 2, 4, 3
    STG = 24576
    ACC = 16; WF = 64; AR = 88
    LPHI = STG*R
    def acc(b, sb): return ACC + (b*SB + sb)*4
    a("s_cmp_ge_u32 s2, 256")
    a("s_cbranch_scc1 L_qkv_end")
    if stamps: stamp_begin(a)
    a("s_load_dwordx4 s[4:7], s[0:1], 8")
    a("s_load_dwordx2 s[20:21], s[0:1], 80")
    tile_decode(a, 8, 32, XM, 26, 27)
    a("v_lshrrev_b32 v1, 6, v0")
    a("v_and_b32 v8, 63, v0")
    a("v_readfirstlane_b32 s28, v1")
    a("v_lshlrev_b32 v1, 4, v8")
    a("s_lshl_b32 s29, s26, 3")
    a("s_add_u32 s29, s29, s28")
    a("v_lshrrev_b32 v10, 2, v8")
    a("v_and_b32 v11, 3, v8")
    a("v_bfe_u32 v12, v8, 4, 1")
    a("v_lshlrev_b32 v12, 1, v12")
    a("v_xor_b32 v12, v12, v11")
    a("v_lshlrev_b32 v14, 6, v10")
    a("v_lshl_add_u32 v14, v12, 4, v14")
    a("s_lshl_b32 s30, s28, 4")
    a("v_add_u32 v10, s30, v10")
    a("s_movk_i32 s31, 6144")
    a("v_mul_lo_u32 v2, v10, s31")
    a("v_lshl_add_u32 v2, v12, 4, v2")
    a("s_lshl_b32 s32, s27, 6")
    a("v_add_u32 v2, s32, v2")
    a("v_lshrrev_b32 v13, 4, v8")
    a("v_lshrrev_b32 v10, 2, v8")
    a("v_lshlrev_b32 v4, 6, v10")
    a("v_lshl_add_u32 v4, v11, 3, v4")
    a("v_and_b32 v12, 1, v13")
    a("v_xor_b32 v9, 1, v12")
    a("v_lshl_add_u32 v5, v9, 5, v4")
    a("v_lshl_add_u32 v4, v12, 5, v4")
    a("s_waitcnt lgkmcnt(0)")
    srd(a, 12, 4, 1024*6144)
    srd(a, 16, 6, 65536)
    a("s_lshl_b32 s35, s29, 16")
    a(f"s_add_u32 s35, s35, {hex(WS_XN)}")
    srd_off(a, 8, 20, "s35", 65536)
    a("s_mul_i32 s44, s28, 3072")
    g = Gemm(a, NB, SB, KS, R, AD, 32, PW, "L_qkv_loop")
    def dma(i):
        a(f"s_add_u32 m0, s42, {i*1024}")
        a(f"s_add_u32 s41, s40, {i*2048}")
        a(f"buffer_load_dwordx4 v2, s[12:15], s41 offen lds")
        if i == PW-1:
            a(f"s_add_u32 s42, s42, {STG}")
            a(f"s_add_u32 s40, s40, {128*6144}")
            a(f"s_cmp_ge_u32 s42, {STG*R}")
            a(f"s_cselect_b32 s45, {STG*R}, 0")
            a(f"s_sub_u32 s42, s42, s45")
    def actload(slot, sb):
        r = AR + (slot*SB + sb)*4
        a(f"buffer_load_dwordx4 {vr(r,4)}, v1, s[8:11], s46 offen offset:{sb*1024}")
        if sb == SB-1: a("s_add_u32 s46, s46, 2048")
    def trread(b, q, ks):
        base = 6 + (b & 1)
        off = (2*ks + q)*3072 + (b>>1)*1024
        a(f"ds_read_b64_tr_b16 {vr(WF+4*b+2*q,2)}, v{base} offset:{off}")
    def adv_slot():
        a(f"s_add_u32 s48, s48, {STG}")
        a(f"s_cmp_ge_u32 s48, {STG*R}")
        a(f"s_cselect_b32 s48, 0, s48")
        a("v_add_u32 v6, s48, v4")
        a("v_add_u32 v7, s48, v5")
    def mfma(b, sb, slot):
        o = acc(b, sb); r = AR + (slot*SB + sb)*4
        if b < 4: a(f"v_mfma_f32_16x16x32_bf16 {vr(o,4)}, {vr(WF+4*b,4)}, {vr(r,4)}, {vr(o,4)}")
        else:     a(f"v_mfma_f32_16x16x32_bf16 {vr(o,4)}, {vr(r,4)}, {vr(WF+4*b,4)}, {vr(o,4)}")
    g.dma, g.actload, g.trread, g.adv_slot, g.mfma = dma, actload, trread, adv_slot, mfma
    a("s_mov_b32 s40, 0"); a("s_mov_b32 s42, s44"); a("s_mov_b32 s46, 0"); a("s_mov_b32 s48, 0")
    g.prologue_loads()
    a("s_and_b32 s33, s28, 1")
    a("s_lshl_b32 s33, s33, 10")
    a(f"s_add_u32 m0, s33, {LPHI}")
    a("s_lshl_b32 s34, s27, 11")
    a("s_add_u32 s33, s33, s34")
    a("buffer_load_dwordx4 v14, s[16:19], s33 offen lds")
    g.seq.append(("res", 0))
    for i in range(48): a(f"v_mov_b32 v{ACC+i}, 0")
    a("v_mov_b32 v6, v4"); a("v_mov_b32 v7, v5")
    g.prologue_sync()
    if stamps: stamp_mid(a, 0)
    g.loop(49)
    if stamps: stamp_mid(a, 1)
    a("s_waitcnt vmcnt(0) lgkmcnt(0)")
    a("s_barrier")
    a(f"s_mov_b32 s60, {hex(f2u(LOG2E))}")
    PH = 64
    a(f"v_add_u32 v6, {LPHI}, v4"); a(f"v_add_u32 v7, {LPHI}, v5")
    for fb in range(2):
        for q in range(2):
            a(f"ds_read_b64_tr_b16 {vr(PH+4*fb+2*q,2)}, v{6+fb} offset:{q*1024}")
    QB = 72; KB = 80; VB = 88
    for sb in range(SB):
        for h in range(2):
            o = acc(2+h, sb)
            a(f"v_cvt_pk_bf16_f32 v{KB+4*sb+2*h}, v{o}, v{o+1}"); a(f"v_cvt_pk_bf16_f32 v{KB+4*sb+2*h+1}, v{o+2}, v{o+3}")
    for vd in range(2):
        for sb in range(SB):
            o = acc(4+vd, sb)
            a(f"v_cvt_pk_bf16_f32 v{VB+4*vd+2*sb}, v{o}, v{o+1}"); a(f"v_cvt_pk_bf16_f32 v{VB+4*vd+2*sb+1}, v{o+2}, v{o+3}")
    for sb in range(SB):
        for h in range(2):
            o = acc(0+h, sb)
            a(f"v_cvt_pk_bf16_f32 v{QB+4*sb+2*h}, v{o}, v{o+1}"); a(f"v_cvt_pk_bf16_f32 v{QB+4*sb+2*h+1}, v{o+2}, v{o+3}")
    LV = 36864; LKV = 53248
    a("s_lshl_b32 s33, s28, 11")
    a(f"s_add_u32 s33, s33, {LV}")
    a("v_add_u32 v9, s33, v1")
    a(f"ds_write_b128 v9, {vr(VB,4)}")
    a(f"ds_write_b128 v9, {vr(VB+4,4)} offset:1024")
    a("s_waitcnt lgkmcnt(2)")
    PK = 16; PQ = 32
    for sb in range(SB):
        for fb in range(2):
            a(f"v_mfma_f32_16x16x32_bf16 {vr(PK+8*sb+4*fb,4)}, {vr(PH+4*fb,4)}, {vr(KB+4*sb,4)}, 0")
    for sb in range(SB):
        for fb in range(2):
            a(f"v_mfma_f32_16x16x32_bf16 {vr(PQ+8*sb+4*fb,4)}, {vr(PH+4*fb,4)}, {vr(QB+4*sb,4)}, 0")
    a("s_nop 7")
    FK = 48
    softmax_pm(a, [[PK+8*sb+j for j in range(8)] for sb in range(SB)], [FK+8*sb for sb in range(SB)], [FK+8*sb+4 for sb in range(SB)], 96)
    a("v_and_b32 v10, 15, v8")
    a("s_lshl_b32 s33, s28, 5")
    a("v_add_u32 v10, s33, v10")
    a("v_mul_u32_u24 v10, 136, v10")
    a("v_lshl_add_u32 v10, v13, 3, v10")
    for sb in range(SB):
        for fbp in range(4):
            a(f"ds_write_b64 v10, {vr(FK+8*sb+2*fbp,2)} offset:{sb*16*136 + fbp*32}")
    a("s_waitcnt lgkmcnt(0)")
    a("s_barrier")
    a("v_lshrrev_b32 v10, 2, v8")
    a("v_mul_u32_u24 v10, 136, v10")
    a("v_lshl_add_u32 v10, v11, 3, v10")
    a("s_lshr_b32 s33, s28, 1")
    a("s_lshl_b32 s34, s33, 5")
    a("v_add_u32 v10, s34, v10")
    a("s_and_b32 s34, s28, 1")
    a("s_lshl_b32 s34, s34, 10")
    a(f"s_add_u32 s34, s34, {LV}")
    a("v_add_u32 v9, s34, v1")
    AF = 96; BF = 128
    for ks in range(8):
        for q in range(2):
            a(f"ds_read_b64_tr_b16 {vr(AF+4*ks+2*q,2)}, v10 offset:{(32*ks+16*q)*136}")
        a(f"ds_read_b128 {vr(BF+4*ks,4)}, v9 offset:{ks*2048}")
        if ks == 3: a("s_waitcnt lgkmcnt(3)")
    ON = 80
    for j in range(4): a(f"v_mov_b32 v{ON+j}, 0x3f803f80")
    KV = 16; ZZ = 20
    for ks in range(8):
        a(f"s_waitcnt lgkmcnt({min(15,3*(7-ks))})")
        a(f"v_mfma_f32_16x16x32_bf16 {vr(KV,4)}, {vr(AF+4*ks,4)}, {vr(BF+4*ks,4)}, {vr(KV,4) if ks else 0}")
        a(f"v_mfma_f32_16x16x32_bf16 {vr(ZZ,4)}, {vr(AF+4*ks,4)}, {vr(ON,4)}, {vr(ZZ,4) if ks else 0}")
    a("s_lshl_b32 s35, s27, 3")
    a(f"s_mul_i32 s35, s35, {KVP_STRIDE}")
    a(f"s_add_u32 s35, s35, {hex(WS_KVP)}")
    srd_off(a, 52, 20, "s35", 8*KVP_STRIDE)
    a(f"s_mul_i32 s36, s26, {KVP_STRIDE}")
    a("s_lshl_b32 s37, s28, 10")
    a("s_add_u32 s38, s36, s37")
    a("s_lshl_b32 s39, s33, 6")
    a("s_add_u32 s39, s39, 8192")
    a("s_add_u32 s56, s36, s39")
    a("v_lshlrev_b32 v12, 4, v13")
    a("s_nop 3")
    a("v_mov_b32 v15, 0x7fc00000")
    for j in range(8):
        a(f"v_cmp_eq_u32 vcc, -1, v{KV+j}")
        a("s_nop 1")
        a(f"v_cndmask_b32 v{KV+j}, v{KV+j}, v15, vcc")
    a(f"buffer_store_dwordx4 {vr(KV,4)}, v1, s[52:55], s38 offen sc1")
    a("s_mov_b32 exec_lo, 0x00010001"); a("s_mov_b32 exec_hi, 0x00010001")
    a(f"buffer_store_dwordx4 {vr(ZZ,4)}, v12, s[52:55], s56 offen sc1")
    a("s_mov_b64 exec, -1")
    if stamps: stamp_mid(a, 2)
    FQ = 48
    softmax_pm(a, [[PQ+8*sb+j for j in range(8)] for sb in range(SB)], [FQ+8*sb for sb in range(SB)], [FQ+8*sb+4 for sb in range(SB)], 96)
    GK = 96; GZ = 128
    a("s_mov_b32 s58, 0")
    a.label("L_qkv_poll")
    a("s_mov_b32 s57, s37"); a("s_mov_b32 s59, s39")
    for p in range(8):
        a(f"buffer_load_dwordx4 {vr(GK+4*p,4)}, v1, s[52:55], s57 offen sc1")
        a(f"buffer_load_dwordx4 {vr(GZ+4*p,4)}, v12, s[52:55], s59 offen sc1")
        if p < 7:
            a(f"s_add_u32 s57, s57, {KVP_STRIDE}"); a(f"s_add_u32 s59, s59, {KVP_STRIDE}")
    a("s_waitcnt vmcnt(0)")
    a(f"v_max3_u32 v16, v{GK}, v{GK+1}, v{GK+2}")
    rest = list(range(GK+3, GK+64))
    cur = 16
    while len(rest) >= 2:
        a(f"v_max3_u32 v16, v16, v{rest[0]}, v{rest[1]}"); rest = rest[2:]
    if rest: a(f"v_max_u32 v16, v16, v{rest[0]}")
    a("v_cmp_eq_u32 vcc, -1, v16")
    a("s_add_u32 s58, s58, 1")
    a("s_cmp_ge_u32 s58, 0x40000")
    a("s_cbranch_scc1 L_qkv_got")
    a("s_cbranch_vccz L_qkv_got")
    a("s_sleep 2")
    a("s_branch L_qkv_poll")
    a.label("L_qkv_got")
    for base in (GK, GZ):
        for st in (16, 8, 4):
            for j in range(st): a(f"v_add_f32 v{base+j}, v{base+j}, v{base+st+j}")
    a(f"v_cvt_pk_bf16_f32 v16, v{GK}, v{GK+1}"); a(f"v_cvt_pk_bf16_f32 v17, v{GK+2}, v{GK+3}")
    a(f"v_cvt_pk_bf16_f32 v18, v{GZ}, v{GZ+1}"); a(f"v_cvt_pk_bf16_f32 v19, v{GZ+2}, v{GZ+3}")
    a("s_and_b32 s34, s28, 1")
    a("s_lshl_b32 s34, s34, 11")
    a("s_lshr_b32 s35, s33, 1")
    a("s_lshl_b32 s35, s35, 10")
    a("s_and_b32 s36, s33, 1")
    a("s_lshl_b32 s36, s36, 3")
    a("s_add_u32 s35, s35, s36")
    a(f"s_add_u32 s35, s35, {LKV}")
    a("v_add_u32 v9, s35, v1")
    a("v_add_u32 v10, s34, v9")
    a("ds_write_b64 v10, v[16:17]")
    a("ds_write_b64 v9, v[18:19] offset:4096")
    a("s_waitcnt lgkmcnt(0)")
    a("s_barrier")
    a(f"v_add_u32 v9, {LKV}, v1")
    for f in range(6):
        a(f"ds_read_b128 {vr(96+4*f,4)}, v9 offset:{f*1024}")
    NUM = 16; DEN = 32
    a("s_waitcnt lgkmcnt(0)")
    for sb in range(SB):
        for kb in range(2):
            a(f"v_mfma_f32_16x16x32_bf16 {vr(DEN+4*sb,4)}, {vr(96+16+4*kb,4)}, {vr(FQ+8*sb+4*kb,4)}, {vr(DEN+4*sb,4) if kb else 0}")
    for sb in range(SB):
        for vd in range(2):
            for kb in range(2):
                o = NUM + (vd*2+sb)*4
                a(f"v_mfma_f32_16x16x32_bf16 {vr(o,4)}, {vr(96+4*(vd*2+kb),4)}, {vr(FQ+8*sb+4*kb,4)}, {vr(o,4) if kb else 0}")
    a("s_lshl_b32 s35, s29, 16")
    a("s_lshl_b32 s36, s27, 11")
    a("s_add_u32 s35, s35, s36")
    a(f"s_add_u32 s35, s35, {hex(WS_O)}")
    srd_off(a, 52, 20, "s35", 2048)
    for sb in range(SB):
        a(f"v_add_f32 v{DEN+4*sb}, {hex(f2u(1e-6))}, v{DEN+4*sb}")
    for sb in range(SB):
        a(f"v_rcp_f32 v{DEN+4*sb}, v{DEN+4*sb}")
    a("s_nop 3")
    for sb in range(SB):
        for vd in range(2):
            o = NUM + (vd*2+sb)*4
            for j in range(4): a(f"v_mul_f32 v{o+j}, v{o+j}, v{DEN+4*sb}")
            a(f"v_cvt_pk_bf16_f32 v{40+4*sb+2*vd}, v{o}, v{o+1}"); a(f"v_cvt_pk_bf16_f32 v{40+4*sb+2*vd+1}, v{o+2}, v{o+3}")
        a(f"buffer_store_dwordx4 {vr(40+4*sb,4)}, v1, s[52:55], 0 offen offset:{sb*1024}")
    if stamps:
        stamp_mid(a, 3)
        stamp_end(a, 20, 28, 96, 1)
    a.label("L_qkv_end")
    a("s_endpgm")
    return kernel_text(name, a.text(), 160), (name, (256,1,1), (512,1,1), STG*R + 2048)

HEADER = open("sequential_preLN__linear_kernel_hedgehog__glu_gated_swiglu__prompt.s.ref").read().split("; Override")[0]

def build(stamps=False, **kw):
    ks = [gen_ln1(stamps=stamps, **kw.get("ln1", {})), gen_qkv(stamps=stamps, **kw.get("qkv", {})), gen_nn("wo", stamps=stamps, **kw.get("wo", {})),
          gen_up(stamps=stamps, **kw.get("up", {})), gen_nn("down", stamps=stamps, **kw.get("down", {}))]
    return HEADER + file_text([l for k, l in ks], [k for k, l in ks])

if __name__ == "__main__":
    import sys
    open("sequential_preLN__linear_kernel_hedgehog__glu_gated_swiglu__prompt.s", "w").write(build())
    open("full_stamps.s", "w").write(build(stamps=True))
```
